```python
import torch

def _softmax(x, axis=-1):
    return torch.softmax(x, dim=axis)
def _gelu(x):
    return torch.nn.functional.gelu(x, approximate="tanh")
def _silu(x):
    return torch.nn.functional.silu(x)
def _sigmoid(x):
    return torch.sigmoid(x)
def _layernorm(x, axis=-1, eps=1e-5):
    m = x.mean(dim=axis, keepdim=True)
    v = x.var(dim=axis, keepdim=True, unbiased=False)
    return (x - m) / torch.sqrt(v + eps)
def _scatter_add(tgt, idx, src, axis=0):
    return tgt.clone().index_add_(axis, idx, src)
def _segment_sum(src, seg, n):
    out = torch.zeros((n,) + src.shape[1:], dtype=src.dtype)
    return out.index_add_(0, seg, src)
def _pad(x, pw):
    flat = tuple(v for pair in reversed(pw) for v in pair)
    return torch.nn.functional.pad(x, flat)

kernel_name = 'recurrent_scan__mha_block_cached__geglu_ffn__decode'

def setup_inputs():

    _w = (lambda a: (lambda t: t.to(torch.bfloat16) if t.is_floating_point() else t)(torch.as_tensor(a)))
    def _A_setup():
        B, Sq, D = 8, 1, 448
        H, Sk, Dh = 16, 4096, 256
        return {
            "x": _w((lambda *s: torch.randn(*s, dtype=torch.bfloat16) * 0.05)(B, Sq, D)),
            "k_cache": _w((lambda *s: torch.randn(*s, dtype=torch.bfloat16) * 1.6)(B, H, Sk, Dh)),
            "v_cache": _w((lambda *s: torch.randn(*s, dtype=torch.bfloat16) * 0.2)(B, H, Sk, Dh)),
            "wq": _w((lambda *s: torch.randn(*s, dtype=torch.bfloat16) * 1.6)(D, H * Dh) * (D ** -0.5)),
            "wo": _w((lambda *s: torch.randn(*s, dtype=torch.bfloat16) * 0.2)(H * Dh, D) * ((H * Dh) ** -0.5)),
        }
    _A_in = _A_setup()

    def _B_setup():
        B, S, D, F = 8, 1, 448, 1792
        return {
            "x": _w((lambda *s: torch.randn(*s, dtype=torch.bfloat16) * 0.05)(B, S, D)),
            "w_gate": _w((lambda *s: torch.randn(*s, dtype=torch.bfloat16) * 0.1)(D, F)),
            "w_up": _w((lambda *s: torch.randn(*s, dtype=torch.bfloat16) * 0.1)(D, F)),
            "w_down": _w((lambda *s: torch.randn(*s, dtype=torch.bfloat16) * 0.1)(F, D)),
        }
    _B_in = _B_setup()

    return {
        "A_x": _A_in["x"],
        "A_k_cache": _A_in["k_cache"],
        "A_v_cache": _A_in["v_cache"],
        "A_wq": _A_in["wq"],
        "A_wo": _A_in["wo"],
        "B_x": _B_in["x"],
        "B_w_gate": _B_in["w_gate"],
        "B_w_up": _B_in["w_up"],
        "B_w_down": _B_in["w_down"],
    }

def reference(A_x, A_k_cache, A_v_cache, A_wq, A_wo, B_x, B_w_gate, B_w_up, B_w_down):
    def _A_ref(x, k_cache, v_cache, wq, wo):
        B, Sq, D = x.shape
        H, Dh = 16, 256
        q = (lambda x, *d: x.permute(*d))((x @ wq).reshape(B, Sq, H, Dh), 0, 2, 1, 3)
        scores = torch.einsum("bhqd,bhkd->bhqk", q, k_cache) * (Dh ** -0.5)
        p = _softmax(scores, axis=-1)
        o = torch.einsum("bhqk,bhkd->bhqd", p, v_cache)
        return (lambda x, *d: x.permute(*d))(o, 0, 2, 1, 3).reshape(B, Sq, H * Dh) @ wo

    def _B_ref(x, w_gate, w_up, w_down):
        return (_gelu(x @ w_gate) * (x @ w_up)) @ w_down

    x = A_x
    xn = _layernorm(x, axis=-1)
    s = _A_ref(xn, A_k_cache, A_v_cache, A_wq, A_wo)
    g = _silu(_B_ref(xn, B_w_gate, B_w_up, B_w_down))
    return x + s * g
```

```python
import sys
NAME = "recurrent_scan__mha_block_cached__geglu_ffn__decode"
def gen(D=8, DF=8, stamps=False, wpol="", name=NAME + "_kernel"):
    o = []
    def e(s): o.append(s)
    L = lambda s: f"L_{s}_{name[-12:]}" if name != NAME + "_kernel" else f"L_{s}"
    QP = 0
    ACC = 4096
    ML = 8192
    CNT = 8256
    FLAG = 8260
    GU = 8448
    SP = 10496
    LDS = SP + 8*2048
    WS_SLOT, WS_FFN, WS_G = 0x100000, 0x200000, 0x300000
    CEXP = "0x3db8aa3b"
    def stamp(k):
        if stamps:
            e(f"    s_memrealtime s[{70+2*k}:{71+2*k}]")
    e(f".globl {name}\n.p2align 8\n.type {name},@function\n{name}:")
    stamp(0)
    e(f"""    s_cmp_ge_u32 s2, 256
    s_cbranch_scc1 {L('end')}
    s_load_dwordx16 s[40:55], s[0:1], 0
    s_load_dwordx8 s[56:63], s[0:1], 64
    v_lshrrev_b32 v1, 6, v0
    v_and_b32 v0, 63, v0
    v_readfirstlane_b32 s26, v1
    s_and_b32 s31, s2, 7
    s_lshr_b32 s32, s2, 3
    s_lshr_b32 s27, s32, 2          ; b
    s_and_b32 s33, s32, 1
    s_lshl_b32 s28, s31, 1
    s_or_b32 s28, s28, s33          ; h
    s_bfe_u32 s29, s32, 0x10001     ; half
    s_and_b32 s30, s32, 3
    s_lshl_b32 s30, s30, 3
    s_add_u32 s30, s30, s31
    s_cmp_ge_u32 s26, 4
    s_cbranch_scc1 {L('helper')}
""")
    KR, VR = 64, 128
    Q, M, AC, LS, PP, P, A, T, MR = 2, 6, 10, 14, 15, 16, 32, 40, 48
    e(f"""    ; ---------------- stream waves
    s_lshl_b32 s33, s27, 4
    s_add_u32 s33, s33, s28
    s_lshl_b32 s33, s33, 1
    s_add_u32 s33, s33, s29
    s_lshl_b32 s34, s33, 20
    s_mov_b32 s35, s34
    s_lshl_b32 s33, s26, 10
    v_lshl_add_u32 v1, v0, 4, s33
    s_waitcnt lgkmcnt(0)
    s_mov_b32 s4, s42
    s_mov_b32 s5, s43
    s_mov_b32 s6, 0x10000000
    s_mov_b32 s7, 0x20000
    s_mov_b32 s8, s44
    s_mov_b32 s9, s45
    s_mov_b32 s10, 0x10000000
    s_mov_b32 s11, 0x20000""")
    def issue(slot):
        slot %= 32
        if slot < 16:
            e(f"    buffer_load_dwordx4 v[{KR+4*slot}:{KR+4*slot+3}], v1, s[4:7], s34 offen nt\n    s_add_u32 s34, s34, 4096")
        else:
            s = slot - 16
            e(f"    buffer_load_dwordx4 v[{VR+4*s}:{VR+4*s+3}], v1, s[8:11], s35 offen nt\n    s_add_u32 s35, s35, 4096")
    for s in range(DF): issue(s)
    e(f"""    v_and_b32 v{T}, 15, v0
    v_lshrrev_b32 v{T+1}, 4, v0
    v_lshrrev_b32 v{T+2}, 3, v{T}
    v_and_b32 v{T+1}, 1, v{T+1}
    v_and_b32 v{T+3}, 1, v0
    v_mov_b32 v{T+4}, 0xffff
    v_lshlrev_b32 v{T+3}, 4, v{T+3}
    v_lshlrev_b32 v{T+4}, v{T+3}, v{T+4}
    v_cmp_eq_u32 vcc, v{T+1}, v{T+2}
    v_bfe_u32 v{T+5}, v0, 1, 2
    s_nop 0
    v_cndmask_b32 v{T+4}, 0, v{T+4}, vcc""")
    for r in range(4):
        e(f"""    v_cmp_eq_u32 vcc, {r}, v{T+5}
    s_nop 1
    v_cndmask_b32 v{M+r}, 0, v{T+4}, vcc""")
    e(f"""    v_mov_b32 v{AC}, 0
    v_mov_b32 v{AC+1}, 0
    v_mov_b32 v{AC+2}, 0
    v_mov_b32 v{AC+3}, 0
    v_mov_b32 v{LS}, 0
    v_mov_b32 v{MR}, 0xff7fffff
    s_mov_b32 s36, 0xcccccccc
    s_mov_b32 s37, 0xcccccccc
    s_mov_b32 s38, 0xaaaaaaaa
    s_mov_b32 s39, 0xaaaaaaaa
    s_mov_b32 s64, {CEXP}
    v_and_b32 v{T}, 31, v0
    v_lshlrev_b32 v{T}, 5, v{T}""")
    for s in range(DF, 32):
        e(f"    s_waitcnt vmcnt({DF-1})")
        issue(s)
    e("    s_barrier")
    for w in range(4):
        e(f"    ds_read_b128 v[{192+8*w}:{195+8*w}], v{T} offset:{QP+1024*w}")
        e(f"    ds_read_b128 v[{196+8*w}:{199+8*w}], v{T} offset:{QP+1024*w+16}")
    e("    s_waitcnt lgkmcnt(0)")
    for k in range(8):
        e(f"    v_add_f32 v{192+k}, v{192+k}, v{200+k}\n    v_add_f32 v{208+k}, v{208+k}, v{216+k}")
    for k in range(8):
        e(f"    v_add_f32 v{192+k}, v{192+k}, v{208+k}")
    for k in range(4):
        e(f"    v_cvt_pk_bf16_f32 v{Q+k}, v{192+2*k}, v{193+2*k}")
    stamp(3)
    def tile(first, last):
        def pre(s):
            if first:
                if s + D >= 32:
                    e(f"    s_waitcnt vmcnt({D-1})"); issue(s + D)
                else:
                    e(f"    s_waitcnt vmcnt({31-s})")
            elif last and s + D >= 32:
                e(f"    s_waitcnt vmcnt({31-s})")
            else:
                e(f"    s_waitcnt vmcnt({D-1})"); issue(s + D)
        for i in range(16):
            pre(i)
            k = KR + 4*i
            e(f"    v_dot2_f32_bf16 v{P+i}, v{k}, v{Q}, 0")
            for c in range(1, 4):
                e(f"    v_dot2_f32_bf16 v{P+i}, v{k+c}, v{Q+c}, v{P+i}")
        for i in range(8): e(f"    v_add_f32_dpp v{P+i}, v{P+i}, v{P+i} row_ror:8 row_mask:0xf bank_mask:0x3")
        for i in range(8): e(f"    v_add_f32_dpp v{P+i}, v{P+i+8}, v{P+i+8} row_ror:8 row_mask:0xf bank_mask:0xc")
        for i in range(4): e(f"    v_add_f32_dpp v{P+i}, v{P+i}, v{P+i} row_half_mirror row_mask:0xf bank_mask:0x5")
        for i in range(4): e(f"    v_add_f32_dpp v{P+i}, v{P+i+4}, v{P+i+4} row_half_mirror row_mask:0xf bank_mask:0xa")
        for i in range(4): e(f"    v_add_f32_dpp v{P+4+i}, v{P+i}, v{P+i} quad_perm:[2,3,0,1] row_mask:0xf bank_mask:0xf")
        e(f"""    v_cndmask_b32 v{P}, v{P+4}, v{P+6}, s[36:37]
    v_cndmask_b32 v{P+1}, v{P+5}, v{P+7}, s[36:37]
    s_nop 0
    v_add_f32_dpp v{P+2}, v{P}, v{P} quad_perm:[1,0,3,2] row_mask:0xf bank_mask:0xf
    v_add_f32_dpp v{P+3}, v{P+1}, v{P+1} quad_perm:[1,0,3,2] row_mask:0xf bank_mask:0xf
    v_cndmask_b32 v{P}, v{P+2}, v{P+3}, s[38:39]
    v_cndmask_b32 v{P+1}, v{P+2}, v{P+3}, s[38:39]
    s_nop 1
    v_permlane16_swap_b32 v{P}, v{P+1}
    v_add_f32 v{P}, v{P}, v{P+1}
    v_cvt_pk_bf16_f32 v{P}, v{P}, v{P}
    v_and_b32 v{P}, 0xffff0000, v{P}
    v_max_f32 v{P+1}, v{P}, v{MR}
    s_nop 1
    v_max_f32_dpp v{P+1}, v{P+1}, v{P+1} quad_perm:[1,0,3,2] row_mask:0xf bank_mask:0xf
    s_nop 1
    v_max_f32_dpp v{P+1}, v{P+1}, v{P+1} quad_perm:[2,3,0,1] row_mask:0xf bank_mask:0xf
    s_nop 1
    v_max_f32_dpp v{P+1}, v{P+1}, v{P+1} row_half_mirror row_mask:0xf bank_mask:0xf
    s_nop 1
    v_max_f32_dpp v{P+1}, v{P+1}, v{P+1} row_ror:8 row_mask:0xf bank_mask:0xf
    v_mov_b32 v{P+2}, v{P+1}
    s_nop 1
    v_permlane32_swap_b32 v{P+1}, v{P+2}
    v_max_f32 v{P+1}, v{P+1}, v{P+2}
    v_sub_f32 v{P+2}, v{MR}, v{P+1}
    v_sub_f32 v{P+3}, v{P}, v{P+1}
    v_mul_f32 v{P+2}, s64, v{P+2}
    v_mul_f32 v{P+3}, s64, v{P+3}
    v_exp_f32 v{P+2}, v{P+2}
    v_exp_f32 v{P+3}, v{P+3}
    v_mov_b32 v{MR}, v{P+1}
    v_mul_f32 v{AC}, v{AC}, v{P+2}
    v_cvt_pk_bf16_f32 v{PP}, v{P+3}, v{P+3}
    v_mul_f32 v{AC+1}, v{AC+1}, v{P+2}
    v_mul_f32 v{AC+2}, v{AC+2}, v{P+2}
    v_mul_f32 v{AC+3}, v{AC+3}, v{P+2}
    v_fma_f32 v{LS}, v{LS}, v{P+2}, v{P+3}""")
        def abuild(i):
            a = A + 4*(i & 1)
            for r in range(4):
                e(f"    v_and_b32_dpp v{a+r}, v{PP}, v{M+r} row_newbcast:{i} row_mask:0xf bank_mask:0xf")
        abuild(0)
        for i in range(16):
            if i < 15: abuild(i+1)
            pre(16+i)
            if i == 15: e("    s_nop 0")
            a = A + 4*(i & 1)
            e(f"    v_mfma_f32_16x16x32_bf16 v[{AC}:{AC+3}], v[{a}:{a+3}], v[{VR+4*i}:{VR+4*i+3}], v[{AC}:{AC+3}]")
    tile(True, False)
    e("    s_mov_b32 s33, 14")
    e(f"{L('loop')}:")
    tile(False, False)
    e(f"    s_sub_u32 s33, s33, 1\n    s_cmp_lg_u32 s33, 0\n    s_cbranch_scc1 {L('loop')}")
    tile(False, True)
    stamp(4)
    e(f"""    v_add_f32_dpp v{LS}, v{LS}, v{LS} quad_perm:[1,0,3,2] row_mask:0xf bank_mask:0xf
    v_lshrrev_b32 v{T}, 5, v0
    v_and_b32 v{T+1}, 15, v0
    v_add_f32_dpp v{LS}, v{LS}, v{LS} quad_perm:[2,3,0,1] row_mask:0xf bank_mask:0xf
    v_lshl_add_u32 v{T}, v{T}, 4, v{T+1}
    v_and_b32 v{T+1}, 16, v0
    v_add_f32_dpp v{LS}, v{LS}, v{LS} row_half_mirror row_mask:0xf bank_mask:0xf
    v_lshl_add_u32 v{T}, v{T}, 5, v{T+1}
    s_lshl_b32 s33, s26, 10
    v_add_f32_dpp v{LS}, v{LS}, v{LS} row_ror:8 row_mask:0xf bank_mask:0xf
    v_add_u32 v{T}, s33, v{T}
    v_mov_b32 v{MR+1}, v{LS}
    s_lshl_b32 s33, s26, 3
    v_mov_b32 v{T+1}, s33
    v_permlane32_swap_b32 v{LS}, v{MR+1}
    ds_write_b128 v{T}, v[{AC}:{AC+3}] offset:{ACC}
    v_add_f32 v{MR+1}, v{LS}, v{MR+1}
    ds_write_b64 v{T+1}, v[{MR}:{MR+1}] offset:{ML}
    s_waitcnt lgkmcnt(0)
    s_barrier
    s_barrier
    s_branch {L('common')}
""")
    B0 = 32
    HM, HA, HD, X0, X1, TM, AD, H = 2, 6, 14, 18, 19, 20, 1, 21
    def srd(lo, hi, size):
        e(f"    s_mov_b32 s12, s{lo}\n    s_mov_b32 s13, s{hi}\n    s_mov_b32 s14, {size}\n    s_mov_b32 s15, 0x20000")
    def dreg(s): return HD if s == 0 else B0 + 4*(s-1)
    def proj(groups, nseg, waits):
        n = len(groups)*nseg
        def ab(gi):
            mr, G = groups[gi]; a = HA + 4*(gi & 1)
            e(f"    v_mov_b32_dpp v{TM}, v{mr} row_newbcast:{G} row_mask:0xf bank_mask:0x3")
            e(f"    v_mov_b32_dpp v{TM}, v{mr} row_newbcast:{8+G} row_mask:0xf bank_mask:0xc")
            for r in range(4): e(f"    v_and_b32 v{a+r}, v{TM}, v{HM+r}")
        ab(0)
        for gi in range(len(groups)):
            if gi + 1 < len(groups): ab(gi+1)
            else: e("    s_nop 1")
            a = HA + 4*(gi & 1)
            if waits is not None: e(f"    s_waitcnt vmcnt({min(63, n - (gi+1)*nseg + waits)})")
            for s in range(nseg):
                b = B0 + 4*(gi*nseg + s); d = dreg(s)
                c = "0" if gi == 0 else f"v[{d}:{d+3}]"
                e(f"    v_mfma_f32_16x16x32_bf16 v[{d}:{d+3}], v[{a}:{a+3}], v[{b}:{b+3}], {c}")
        e("    s_nop 7")
        for s in range(0, nseg, 2):
            d0 = dreg(s); d1 = dreg(s+1) if s+1 < nseg else dreg(nseg)
            for r in range(4): e(f"    v_permlane32_swap_b32 v{d0+r}, v{d1+r}")
        e("    s_nop 0")
        for s in range(0, nseg, 2):
            d0 = dreg(s); d1 = dreg(s+1) if s+1 < nseg else dreg(nseg)
            for r in range(4): e(f"    v_add_f32_dpp v{d0+r}, v{d1+r}, v{d0+r} row_ror:8 row_mask:0xf bank_mask:0xf")
    def rowreduce(regs):
        for s in (0, 2, 4, 6):
            for r in range(4): e(f"    v_permlane16_swap_b32 v{regs[s]+r}, v{regs[s+1]+r}")
        for s in (0, 2, 4, 6):
            for r in range(4): e(f"    v_add_f32 v{regs[s]+r}, v{regs[s]+r}, v{regs[s+1]+r}")
        for s in (0, 4):
            for r in range(4): e(f"    v_permlane32_swap_b32 v{regs[s]+r}, v{regs[s+2]+r}")
        for s in (0, 4):
            for r in range(4): e(f"    v_add_f32 v{regs[s]+r}, v{regs[s]+r}, v{regs[s+2]+r}")
    def bfr(v): e(f"    v_cvt_pk_bf16_f32 v{v}, v{v}, v{v}\n    v_and_b32 v{v}, 0xffff0000, v{v}")
    def wsum(v, t):
        e(f"""    s_nop 1
    v_add_f32_dpp v{v}, v{v}, v{v} quad_perm:[1,0,3,2] row_mask:0xf bank_mask:0xf
    s_nop 1
    v_add_f32_dpp v{v}, v{v}, v{v} quad_perm:[2,3,0,1] row_mask:0xf bank_mask:0xf
    s_nop 1
    v_add_f32_dpp v{v}, v{v}, v{v} row_half_mirror row_mask:0xf bank_mask:0xf
    s_nop 1
    v_add_f32_dpp v{v}, v{v}, v{v} row_ror:8 row_mask:0xf bank_mask:0xf
    v_mov_b32 v{t}, v{v}
    s_nop 1
    v_permlane16_swap_b32 v{v}, v{t}
    v_add_f32 v{v}, v{v}, v{t}
    v_mov_b32 v{t}, v{v}
    s_nop 1
    v_permlane32_swap_b32 v{v}, v{t}
    v_add_f32 v{v}, v{v}, v{t}""")
    xg = [(X0, G) for G in range(8)] + [(X1, G) for G in range(6)]
    e(f"""{L('helper')}:
    s_sub_u32 s26, s26, 4
    s_mul_i32 s33, s27, 896
    s_mul_i32 s34, s26, 224
    v_lshrrev_b32 v{H}, 3, v0       ; rho
    v_and_b32 v{H+1}, 7, v0
    v_lshlrev_b32 v{H+2}, 4, v0
    v_lshl_add_u32 v{H+3}, v0, 1, s34
    v_mul_u32_u24 v{H+4}, 6, v{H}
    v_add_u32 v{H+4}, v{H+4}, v{H+1}
    v_lshl_add_u32 v{H+4}, v{H+4}, 1, s34
    v_and_b32 v{H+3}, -4, v{H+3}
    v_and_b32 v{H+4}, -4, v{H+4}
    s_waitcnt lgkmcnt(0)
    s_add_u32 s16, s40, s33
    s_addc_u32 s17, s41, 0
    s_mov_b32 s18, 896
    s_mov_b32 s19, 0x20000
    buffer_load_dwordx4 v[{HA}:{HA+3}], v{H+2}, s[16:19], 0 offen
    buffer_load_dword v{X0}, v{H+3}, s[16:19], 0 offen
    buffer_load_dword v{X1}, v{H+4}, s[16:19], 0 offen offset:128""")
    srd(46, 47, 448*8192)
    e(f"""    v_lshlrev_b32 v{H+5}, 4, v{H+1}
    v_lshl_add_u32 v{AD}, v{H}, 16, v{H+5}          ; 8 rows * 8192
    v_mul_u32_u24 v{H+6}, 49152, v{H}
    v_add_u32 v{H+6}, v{H+6}, v{H+5}                ; 6 rows * 8192
    s_mul_i32 s33, s26, {112*8192}
    s_lshl_b32 s34, s28, 9
    s_add_u32 s33, s33, s34""")
    for gi in range(14):
        if gi == 8: e(f"    s_add_u32 s33, s33, {56*8192}")
        for s in range(4):
            b = B0 + 4*(gi*4+s)
            e(f"    buffer_load_dwordx4 v[{b}:{b+3}], v{AD if gi < 8 else H+6}, s[12:15], s33 offen offset:{128*s} {wpol}")
        e(f"    s_add_u32 s33, s33, 8192")
    e(f"""    s_mov_b32 s20, s62
    s_mov_b32 s21, s63
    s_mov_b32 s22, 0x1000000
    s_mov_b32 s23, 0x20000
    v_and_b32 v{H+7}, 1, v0
    v_mov_b32 v{H+8}, 0xffff
    v_lshlrev_b32 v{H+7}, 4, v{H+7}
    v_lshlrev_b32 v{H+8}, v{H+7}, v{H+8}
    v_bfe_u32 v{H+7}, v0, 1, 2""")
    for r in range(4):
        e(f"""    v_cmp_eq_u32 vcc, {r}, v{H+7}
    s_nop 1
    v_cndmask_b32 v{HM+r}, 0, v{H+8}, vcc""")
    e(f"""    v_mov_b32 v{H+7}, 0
    v_mov_b32 v{H+8}, {CNT}
    ds_write_b32 v{H+8}, v{H+7}
    s_waitcnt vmcnt(56)""")
    for k in range(4):
        e(f"    v_lshlrev_b32 v{HA+4+k}, 16, v{HA+k}\n    v_and_b32 v{HA+k}, 0xffff0000, v{HA+k}")
    e(f"    v_add_f32 v{H+7}, v{HA}, v{HA+1}")
    for k in range(2, 8): e(f"    v_add_f32 v{H+7}, v{H+7}, v{HA+k}")
    wsum(H+7, H+8)
    e(f"    v_mul_f32 v{H+7}, 0x3b124925, v{H+7}     ; mean (1/448)")
    for k in range(8): e(f"    v_sub_f32 v{HA+k}, v{HA+k}, v{H+7}")
    e(f"    v_mul_f32 v{H+9}, v{HA}, v{HA}")
    for k in range(1, 8): e(f"    v_fmac_f32 v{H+9}, v{HA+k}, v{HA+k}")
    e(f"""    v_cmp_gt_u32 vcc, 56, v0
    s_nop 1
    v_cndmask_b32 v{H+9}, 0, v{H+9}, vcc""")
    wsum(H+9, H+8)
    e(f"    v_mul_f32 v{H+9}, 0x3b124925, v{H+9}     ; variance")
    bfr(H+7); bfr(H+9)
    e(f"    v_add_f32 v{H+9}, 0x3727c5ac, v{H+9}     ; + 1e-5")
    bfr(H+9)
    e(f"    v_sqrt_f32 v{H+9}, v{H+9}\n    s_nop 0")
    bfr(H+9)
    e(f"""    v_rcp_f32 v{H+9}, v{H+9}
    v_not_b32 v{H+8}, v0
    v_and_b32 v{H+8}, 1, v{H+8}
    v_lshlrev_b32 v{H+8}, 4, v{H+8}
    v_lshlrev_b32 v{X0}, v{H+8}, v{X0}
    v_lshlrev_b32 v{X1}, v{H+8}, v{X1}
    v_and_b32 v{X0}, 0xffff0000, v{X0}
    v_and_b32 v{X1}, 0xffff0000, v{X1}
    v_sub_f32 v{X0}, v{X0}, v{H+7}
    v_sub_f32 v{X1}, v{X1}, v{H+7}""")
    bfr(X0); bfr(X1)
    e(f"""    v_mul_f32 v{X0}, v{X0}, v{H+9}
    v_mul_f32 v{X1}, v{X1}, v{H+9}
    v_cvt_pk_bf16_f32 v{X0}, v{X0}, v{X0}
    v_cvt_pk_bf16_f32 v{X1}, v{X1}, v{X1}
    v_lshrrev_b32 v{H+7}, 5, v0
    v_lshlrev_b32 v{H+7}, 8, v{H+7}
    v_lshl_add_u32 v{H+7}, v{H+1}, 5, v{H+7}
    v_and_b32 v{H+8}, 16, v0
    v_add_u32 v{H+7}, v{H+7}, v{H+8}
    s_mov_b32 s36, 0x00ff00ff
    s_mov_b32 s37, 0x00ff00ff""")
    CO = H+7
    proj(xg, 4, 0)
    e(f"""    s_lshl_b32 s33, s26, 10
    v_add_u32 v{H+8}, s33, v{CO}
    s_mov_b64 exec, s[36:37]
    ds_write_b128 v{H+8}, v[{dreg(0)}:{dreg(0)+3}] offset:{QP}
    ds_write_b128 v{H+8}, v[{dreg(2)}:{dreg(2)+3}] offset:{QP+512}
    s_mov_b64 exec, -1
    s_waitcnt lgkmcnt(0)
    s_barrier                      ; #1""")
    e(f"""    s_cmp_ge_u32 s30, 28
    s_cbranch_scc1 {L('wo')}
    v_mul_u32_u24 v{AD}, {8*3584}, v{H}
    v_add_u32 v{AD}, v{AD}, v{H+5}
    v_mul_u32_u24 v{H+6}, {6*3584}, v{H}
    v_add_u32 v{H+6}, v{H+6}, v{H+5}
    s_mul_i32 s33, s26, {112*3584}
    s_lshl_b32 s34, s30, 7
    s_add_u32 s33, s33, s34
    s_mov_b32 s4, s52
    s_mov_b32 s5, s53
    s_mov_b32 s6, {448*3584}
    s_mov_b32 s7, 0x20000""")
    srd(54, 55, 448*3584)
    for gi in range(14):
        if gi == 8: e(f"    s_add_u32 s33, s33, {56*3584}")
        for s in range(2):
            b = B0 + 4*(gi*2+s)
            e(f"    buffer_load_dwordx4 v[{b}:{b+3}], v{AD if gi < 8 else H+6}, s[{4 if s == 0 else 12}:{7 if s == 0 else 15}], s33 offen {wpol}")
        e(f"    s_add_u32 s33, s33, 3584")
    proj(xg, 2, 0)
    e(f"""    s_lshl_b32 s33, s26, 9
    v_add_u32 v{H+8}, s33, v{CO}
    s_mov_b64 exec, s[36:37]
    ds_write_b128 v{H+8}, v[{dreg(0)}:{dreg(0)+3}] offset:{GU}
    s_mov_b64 exec, 1
    v_mov_b32 v{H+8}, {CNT}
    v_mov_b32 v{H+9}, 1
    s_waitcnt lgkmcnt(0)
    ds_add_u32 v{H+8}, v{H+9}
    s_mov_b64 exec, -1
    s_cmp_lg_u32 s26, 0
    s_cbranch_scc1 {L('wo')}""")
    def load56(rowbase_sgpr):
        e(f"""    v_mul_u32_u24 v{AD}, {8*896}, v{H}
    v_add_u32 v{AD}, v{AD}, v{H+5}""")
        for G in range(8):
            for s in range(7):
                b = B0 + 4*(G*7+s)
                e(f"    buffer_load_dwordx4 v[{b}:{b+3}], v{AD}, s[12:15], s{rowbase_sgpr} offen offset:{128*s} {wpol}")
            e(f"    s_add_u32 s{rowbase_sgpr}, s{rowbase_sgpr}, 896")
    srd(56, 57, 1792*896)
    e(f"    s_mul_i32 s33, s30, {64*896}")
    load56(33)
    e(f"""    v_mov_b32 v{H+8}, {CNT}
{L('spin')}:
    ds_read_b32 v{H+9}, v{H+8}
    s_waitcnt lgkmcnt(0)
    v_readfirstlane_b32 s33, v{H+9}
    s_cmp_lt_u32 s33, 4
    s_cbranch_scc0 {L('spun')}
    s_sleep 2
    s_branch {L('spin')}
{L('spun')}:
    v_lshlrev_b32 v{H+8}, 2, v0""")
    for w in range(4):
        e(f"    ds_read_b32 v{HA+w}, v{H+8} offset:{GU+512*w}\n    ds_read_b32 v{HA+4+w}, v{H+8} offset:{GU+512*w+256}")
    e(f"""    s_waitcnt lgkmcnt(0)
    v_add_f32 v{HA}, v{HA}, v{HA+1}
    v_add_f32 v{HA+2}, v{HA+2}, v{HA+3}
    v_add_f32 v{HA+4}, v{HA+4}, v{HA+5}
    v_add_f32 v{HA+6}, v{HA+6}, v{HA+7}
    v_add_f32 v{HA}, v{HA}, v{HA+2}
    v_add_f32 v{HA+4}, v{HA+4}, v{HA+6}""")
    bfr(HA); bfr(HA+4)
    e(f"""    v_mul_f32 v{HA+1}, v{HA}, v{HA}
    v_mul_f32 v{HA+1}, 0x3d372713, v{HA+1}
    v_fma_f32 v{HA+1}, v{HA+1}, v{HA}, v{HA}
    v_mul_f32 v{HA+1}, 0xc0135761, v{HA+1}
    v_exp_f32 v{HA+1}, v{HA+1}
    s_nop 0
    v_add_f32 v{HA+1}, 1.0, v{HA+1}
    v_rcp_f32 v{HA+1}, v{HA+1}
    s_nop 0
    v_mul_f32 v{HA}, v{HA}, v{HA+1}""")
    bfr(HA)
    e(f"""    v_mul_f32 v{X0}, v{HA}, v{HA+4}
    v_cvt_pk_bf16_f32 v{X0}, v{X0}, v{X0}
    s_nop 1""")
    g8 = [(X0, G) for G in range(8)]
    proj(g8, 7, 0)
    e(f"""    s_lshl_b32 s33, s27, 5
    s_add_u32 s33, s33, s30
    s_lshl_b32 s33, s33, 11
    s_add_u32 s33, s33, {WS_FFN}
    s_mov_b64 exec, s[36:37]""")
    for s in (0, 2, 4): e(f"    buffer_store_dwordx4 v[{dreg(s)}:{dreg(s)+3}], v{CO}, s[20:23], s33 offen offset:{256*s} sc1")
    e(f"""    s_mov_b32 exec_hi, 0
    buffer_store_dwordx4 v[{dreg(6)}:{dreg(6)+3}], v{CO}, s[20:23], s33 offen offset:{256*6} sc1
    s_mov_b64 exec, 1
    s_lshl_b32 s33, s27, 4
    s_add_u32 s33, s33, 128
    v_mov_b32 v{H+8}, s33
    v_mov_b32 v{H+9}, 1
    s_waitcnt vmcnt(0)
    global_atomic_add v{H+9}, v{H+8}, v{H+9}, s[60:61] sc0 sc1
    s_waitcnt vmcnt(0)
    v_readfirstlane_b32 s33, v{H+9}
    s_mov_b64 exec, -1
    s_cmp_lg_u32 s33, 27
    s_cbranch_scc1 {L('wo')}
    v_lshrrev_b32 v{H+8}, 4, v0
    v_and_b32 v{H+9}, 15, v0
    v_lshlrev_b32 v{H+9}, 4, v{H+9}
    v_lshl_add_u32 v{H+8}, v{H+8}, 11, v{H+9}
    s_lshl_b32 s33, s27, 16
    s_add_u32 s33, s33, {WS_FFN}""")
    for k in range(7):
        for s in range(7):
            b = B0 + 4*(k*8+s)
            e(f"    buffer_load_dwordx4 v[{b}:{b+3}], v{H+8}, s[20:23], s33 offen offset:{256*s} sc1")
        e("    s_add_u32 s33, s33, 8192")
    for r in range(4): e(f"    v_mov_b32 v{B0+28+r}, 0")
    e("    s_waitcnt vmcnt(0)")
    for k in range(1, 7):
        for c in range(28): e(f"    v_add_f32 v{B0+c}, v{B0+c}, v{B0+32*k+c}")
    e("    s_nop 1")
    rowreduce([B0+4*s for s in range(8)])
    for c in (0, 1, 2, 3, 16, 17, 18, 19):
        v = B0 + c
        bfr(v)
        e(f"""    v_mul_f32 v{H+9}, 0xbfb8aa3b, v{v}
    v_exp_f32 v{H+9}, v{H+9}
    s_nop 0
    v_add_f32 v{H+9}, 1.0, v{H+9}
    v_rcp_f32 v{H+9}, v{H+9}
    s_nop 0
    v_mul_f32 v{v}, v{v}, v{H+9}""")
        bfr(v)
    e(f"""    v_lshlrev_b32 v{H+8}, 4, v0
    s_lshl_b32 s33, s27, 11
    s_add_u32 s33, s33, {WS_G}
    buffer_store_dwordx4 v[{B0}:{B0+3}], v{H+8}, s[20:23], s33 offen sc1
    buffer_store_dwordx4 v[{B0+16}:{B0+19}], v{H+8}, s[20:23], s33 offen offset:1024 sc1
    s_waitcnt vmcnt(0)""")
    e(f"{L('wo')}:")
    srd(48, 49, 4096*896)
    e(f"""    s_lshl_b32 s33, s28, 2
    s_add_u32 s33, s33, s26
    s_mul_i32 s33, s33, {64*896}""")
    load56(33)
    e(f"""    s_lshl_b32 s33, s26, 8
    v_lshl_add_u32 v{H+8}, v0, 2, s33
    v_mov_b32 v{H+9}, 0
    s_mov_b32 s64, {CEXP}
    s_lshl_b32 s33, s26, 11
    v_add_u32 v{CO}, s33, v{CO}
    s_waitcnt vmcnt(0)""")
    stamp(3)
    e(f"""    s_barrier                      ; #2
    ds_read_b128 v[{HA}:{HA+3}], v{H+9} offset:{ML}
    ds_read_b128 v[{HA+4}:{HA+7}], v{H+9} offset:{ML+16}""")
    for w in range(4): e(f"    ds_read_b32 v{HD+w}, v{H+8} offset:{ACC+1024*w}")
    e(f"""    s_waitcnt lgkmcnt(4)
    v_max_f32 v{H+2}, v{HA}, v{HA+2}
    v_max3_f32 v{H+2}, v{H+2}, v{HA+4}, v{HA+6}      ; M""")
    for w in range(4): e(f"    v_sub_f32 v{HA+2*w}, v{HA+2*w}, v{H+2}")
    for w in range(4): e(f"    v_mul_f32 v{HA+2*w}, s64, v{HA+2*w}")
    for w in range(4): e(f"    v_exp_f32 v{HA+2*w}, v{HA+2*w}")
    e(f"""    s_waitcnt lgkmcnt(0)
    v_mul_f32 v{X0}, v{HA}, v{HD}
    v_mul_f32 v{H+3}, v{HA}, v{HA+1}""")
    for w in range(1, 4): e(f"    v_fmac_f32 v{X0}, v{HA+2*w}, v{HD+w}\n    v_fmac_f32 v{H+3}, v{HA+2*w}, v{HA+2*w+1}")
    e(f"""    v_cvt_pk_bf16_f32 v{X0}, v{X0}, v{X0}
    s_nop 1""")
    proj(g8, 7, None)
    e(f"    s_mov_b64 exec, s[36:37]")
    for s in (0, 2, 4, 6): e(f"    ds_write_b128 v{CO}, v[{dreg(s)}:{dreg(s)+3}] offset:{SP+256*s}")
    e(f"""    s_mov_b64 exec, -1
    s_waitcnt lgkmcnt(0)
    s_barrier                      ; #3
    s_cmp_lg_u32 s26, 0
    s_cbranch_scc1 {L('hcommon')}
    v_lshlrev_b32 v{H+8}, 4, v0""")
    for w in range(4):
        e(f"    ds_read_b128 v[{B0+8*w}:{B0+8*w+3}], v{H+8} offset:{SP+2048*w}\n    ds_read_b128 v[{B0+8*w+4}:{B0+8*w+7}], v{H+8} offset:{SP+2048*w+1024}")
    e(f"""    s_lshl_b32 s33, s27, 4
    s_add_u32 s33, s33, s28
    s_lshl_b32 s33, s33, 1
    s_add_u32 s33, s33, s29
    s_lshl_b32 s33, s33, 11
    s_add_u32 s33, s33, {WS_SLOT}
    v_cmp_eq_u32 vcc, 48, v0
    s_waitcnt lgkmcnt(0)""")
    for c in range(8): e(f"    v_add_f32 v{B0+c}, v{B0+c}, v{B0+8+c}\n    v_add_f32 v{B0+16+c}, v{B0+16+c}, v{B0+24+c}")
    for c in range(8): e(f"    v_add_f32 v{B0+c}, v{B0+c}, v{B0+16+c}")
    e(f"""    v_cndmask_b32 v{B0+4}, v{B0+4}, v{H+2}, vcc
    v_cndmask_b32 v{B0+5}, v{B0+5}, v{H+3}, vcc
    buffer_store_dwordx4 v[{B0}:{B0+3}], v{H+8}, s[20:23], s33 offen sc1
    s_mov_b32 exec_hi, 0x1ffff
    buffer_store_dwordx4 v[{B0+4}:{B0+7}], v{H+8}, s[20:23], s33 offen offset:1024 sc1
    s_mov_b64 exec, 1
    s_lshl_b32 s33, s27, 4
    v_mov_b32 v{H+8}, s33
    v_mov_b32 v{H+9}, 1
    v_mov_b32 v{H+2}, {FLAG}
    s_waitcnt vmcnt(0)""")
    stamp(5)
    e(f"""    global_atomic_add v{H+9}, v{H+8}, v{H+9}, s[60:61] sc0 sc1
    s_waitcnt vmcnt(0)
    ds_write_b32 v{H+2}, v{H+9}
    s_mov_b64 exec, -1
    s_waitcnt lgkmcnt(0)""")
    stamp(6)
    e(f"""{L('hcommon')}:
    s_add_u32 s26, s26, 4
{L('common')}:
    s_mov_b32 s20, s62
    s_mov_b32 s21, s63
    s_mov_b32 s22, 0x1000000
    s_mov_b32 s23, 0x20000
    v_mov_b32 v1, {FLAG}
    v_lshrrev_b32 v2, 4, v0
    v_and_b32 v3, 15, v0
    v_lshlrev_b32 v2, 11, v2
    v_lshl_add_u32 v3, v3, 4, v2
    s_lshl_b32 s33, s27, 3
    s_add_u32 s33, s33, s26
    s_lshl_b32 s33, s33, 13
    s_add_u32 s33, s33, {WS_SLOT}
    s_mov_b32 s64, {CEXP}
    s_barrier                      ; #4
    ds_read_b32 v1, v1
    s_waitcnt lgkmcnt(0)
    v_readfirstlane_b32 s34, v1
    s_cmp_lg_u32 s34, 31
    s_cbranch_scc1 {L('fin')}
    buffer_load_dwordx2 v[4:5], v2, s[20:23], s33 offen offset:1792 sc1""")
    for s in range(7): e(f"    buffer_load_dwordx4 v[{32+4*s}:{35+4*s}], v3, s[20:23], s33 offen offset:{256*s} sc1")
    e(f"""    s_cmp_lg_u32 s26, 0
    s_cbranch_scc1 {L('nox')}
    s_mul_i32 s34, s27, 896
    s_add_u32 s16, s40, s34
    s_addc_u32 s17, s41, 0
    s_mov_b32 s18, 896
    s_mov_b32 s19, 0x20000
    s_add_u32 s12, s58, s34
    s_addc_u32 s13, s59, 0
    s_mov_b32 s14, 896
    s_mov_b32 s15, 0x20000
    s_lshl_b32 s34, s27, 11
    s_add_u32 s34, s34, {WS_G}
    v_lshlrev_b32 v10, 4, v0
    v_lshlrev_b32 v11, 3, v0
    buffer_load_dwordx4 v[16:19], v10, s[20:23], s34 offen sc1
    buffer_load_dwordx4 v[20:23], v10, s[20:23], s34 offen offset:1024 sc1
    buffer_load_dwordx2 v[24:25], v11, s[16:19], 0 offen
    buffer_load_dwordx2 v[26:27], v11, s[16:19], 0 offen offset:512
{L('nox')}:
    v_mov_b32 v60, 0
    v_mov_b32 v61, 0
    v_mov_b32 v62, 0
    v_mov_b32 v63, 0
    s_waitcnt vmcnt(0)
    v_mov_b32 v6, v4
    v_mov_b32 v8, v4
    s_nop 1
    v_permlane16_swap_b32 v6, v8
    v_max_f32 v6, v6, v8
    v_sub_f32 v4, v4, v6
    v_mul_f32 v4, s64, v4
    v_exp_f32 v4, v4
    s_nop 0
    v_mul_f32 v5, v5, v4
    v_mov_b32 v7, v5
    s_nop 1
    v_permlane16_swap_b32 v5, v7
    v_add_f32 v5, v5, v7
    v_rcp_f32 v5, v5
    s_nop 0
    v_mul_f32 v4, v4, v5""")
    for c in range(28): e(f"    v_mul_f32 v{32+c}, v{32+c}, v4")
    e("    s_nop 1")
    rowreduce([32+4*s for s in range(8)])
    e(f"""    s_lshl_b32 s34, s26, 11
    v_lshl_add_u32 v1, v0, 4, s34
    ds_write_b128 v1, v[32:35] offset:{SP}
    ds_write_b128 v1, v[48:51] offset:{SP+1024}
    s_waitcnt lgkmcnt(0)
    s_barrier                      ; #5
    s_cmp_lg_u32 s26, 0
    s_cbranch_scc1 {L('fin')}""")
    for w in range(8):
        e(f"    ds_read_b128 v[{32+8*w}:{35+8*w}], v1 offset:{SP+2048*w}\n    ds_read_b128 v[{36+8*w}:{39+8*w}], v1 offset:{SP+2048*w+1024}")
    e("    s_waitcnt lgkmcnt(0)")
    for st in (32, 16, 8):
        for c in range(st): e(f"    v_add_f32 v{32+c}, v{32+c}, v{32+st+c}")
    for c in range(8):
        bfr(32+c)
        e(f"    v_mul_f32 v{32+c}, v{32+c}, v{16+c}")
        bfr(32+c)
        xr = 24 + c//2
        if c & 1: e(f"    v_and_b32 v8, 0xffff0000, v{xr}")
        else: e(f"    v_lshlrev_b32 v8, 16, v{xr}")
        e(f"    v_add_f32 v{32+c}, v{32+c}, v8")
    for c in range(4): e(f"    v_cvt_pk_bf16_f32 v{40+c}, v{32+2*c}, v{33+2*c}")
    e(f"""    buffer_store_dwordx2 v[40:41], v11, s[12:15], 0 offen
    buffer_store_dwordx2 v[42:43], v11, s[12:15], 0 offen offset:512""")
    e(f"{L('fin')}:")
    if stamps:
        e(f"""    s_waitcnt vmcnt(0)
    s_memrealtime s[72:73]
    s_getreg_b32 s74, hwreg(HW_REG_XCC_ID)
    s_mov_b32 s75, 0
    s_waitcnt lgkmcnt(0)
    s_mov_b64 exec, 1
    s_lshl_b32 s33, s2, 6
    v_mov_b32 v1, s33
    s_cmp_eq_u32 s26, 0
    s_cbranch_scc0 {L('st4')}""")
        for k in (0, 1, 2, 3, 4):
            e(f"    v_mov_b32 v2, s{70+2*k}\n    v_mov_b32 v3, s{71+2*k}\n    buffer_store_dwordx2 v[2:3], v1, s[20:23], 0 offen offset:{8*k}")
        e(f"""{L('st4')}:
    s_cmp_eq_u32 s26, 4
    s_cbranch_scc0 {L('end')}""")
        for k, kk in ((5, 5), (6, 6), (3, 7)):
            e(f"    v_mov_b32 v2, s{70+2*k}\n    v_mov_b32 v3, s{71+2*k}\n    buffer_store_dwordx2 v[2:3], v1, s[20:23], 0 offen offset:{8*kk}")
    e(f"{L('end')}:\n    s_endpgm")
    desc = f""".p2align 6
.amdhsa_kernel {name}
  .amdhsa_next_free_vgpr 256
  .amdhsa_next_free_sgpr 96
  .amdhsa_accum_offset 256
  .amdhsa_group_segment_fixed_size 0
  .amdhsa_kernarg_size 96
  .amdhsa_user_sgpr_count 2
  .amdhsa_user_sgpr_kernarg_segment_ptr 1
  .amdhsa_system_sgpr_workgroup_id_x 1
.end_amdhsa_kernel
"""
    return "\n".join(o) + "\n", desc, LDS

def final(path, **kw):
    body, desc, lds = gen(**kw)
    ref = open("cdna_kernels/" + NAME + ".s.ref").read().split("\n")
    head = [l for l in ref if l.startswith(";") and "@launch" not in l]
    s = "\n".join(head) + f"\n; @launch grid=(256,1,1) block=(512,1,1) lds={lds}\n" + '.amdgcn_target "amdgcn-amd-amdhsa--gfx950"\n.text\n' + body + '.section .rodata,"a"\n' + desc
    open(path, "w").write(s)
if __name__ == "__main__":
    final("cdna_kernels/" + NAME + ".s")
```

```python
import sys
NAME = "recurrent_scan__mha_block_cached__geglu_ffn__decode"
def gen(D=6, DF=6, stamps=False, TH=2, SLP=4, SLQ=2, skip="", name=NAME + "_kernel"):
    o = []
    def e(s): o.append(s)
    L = lambda s: f"L_{s}_{name[-12:]}" if name != NAME + "_kernel" else f"L_{s}"
    QP = 0
    ACC = 4096
    ML = 8192
    CNT = 8256
    TAGL = 8260
    GX = 8320
    XN = 8448
    XP = 912
    SP = 16384
    WT = 24576
    WD = WT + 14336
    LDS = WD + 8192
    EPO, QA, F1A, HA_, DA, MA = 0x80000, 0x100000, 0x200000, 0x300000, 0x400000, 0x500000
    CEXP = "0x3db8aa3b"
    TAG, TO = 65, 76
    def stamp(k):
        if stamps:
            e(f"    s_memrealtime s[{80+2*k}:{81+2*k}]")
    uid = [0]
    def gather(regs, voff, soff, offs, masks, slp, first_issued=False):
        uid[0] += 1; lab = L(f"g{uid[0]}")
        n = len(regs)
        def setm():
            for k in range(n):
                lo, hi = masks[k] & 0xffffffff, masks[k] >> 32
                e(f"    s_mov_b32 s{66+2*k}, {lo:#x}\n    s_mov_b32 s{67+2*k}, {hi:#x}")
            e(f"    s_mov_b32 s{TO}, 0x8000")
        def loads():
            for k in range(n):
                e(f"    s_mov_b64 exec, s[{66+2*k}:{67+2*k}]")
                so = soff[k] if isinstance(soff, list) else soff
                e(f"    buffer_load_dwordx4 v[{regs[k]}:{regs[k]+3}], v{voff}, s[20:23], s{so} offen offset:{offs[k]} sc1")
        def rest():
            e(f"    s_branch {lab}c\n{lab}:")
            if slp: e(f"    s_sleep {slp}")
            loads()
            e(f"{lab}c:\n    s_waitcnt vmcnt(0)")
            for k in range(n):
                e(f"""    s_mov_b64 exec, s[{66+2*k}:{67+2*k}]
    v_cmp_ne_u32 vcc, s{TAG}, v{regs[k]+1}
    v_cmp_ne_u32 s[74:75], s{TAG}, v{regs[k]+3}
    s_or_b64 s[{66+2*k}:{67+2*k}], vcc, s[74:75]""")
            e(f"    s_mov_b64 s[74:75], s[66:67]")
            for k in range(1, n): e(f"    s_or_b64 s[74:75], s[74:75], s[{66+2*k}:{67+2*k}]")
            e(f"""    s_cmp_eq_u64 s[74:75], 0
    s_cbranch_scc1 {lab}d
    s_sub_u32 s{TO}, s{TO}, 1
    s_cbranch_scc0 {lab}
{lab}d:
    s_mov_b64 exec, -1""")
        setm(); loads()
        if first_issued:
            e("    s_mov_b64 exec, -1")
            return rest
        rest()
    FULL = (1 << 64) - 1
    e(f".globl {name}\n.p2align 8\n.type {name},@function\n{name}:")
    stamp(0)
    e(f"""    s_cmp_ge_u32 s2, 256
    s_cbranch_scc1 {L('end')}
    s_load_dwordx16 s[40:55], s[0:1], 0
    s_load_dwordx8 s[56:63], s[0:1], 64
    v_lshrrev_b32 v1, 6, v0
    v_and_b32 v0, 63, v0
    v_readfirstlane_b32 s26, v1
    s_and_b32 s31, s2, 7
    s_lshr_b32 s32, s2, 3
    s_lshr_b32 s27, s32, 2          ; b
    s_and_b32 s33, s32, 1
    s_lshl_b32 s28, s31, 1
    s_or_b32 s28, s28, s33          ; h
    s_bfe_u32 s29, s32, 0x10001     ; half
    s_and_b32 s30, s32, 3
    s_lshl_b32 s30, s30, 3
    s_add_u32 s30, s30, s31
    s_lshl_b32 s31, s28, 1
    s_add_u32 s31, s31, s29         ; p = 2h + half
    s_mov_b32 s22, 0x1000000
    s_mov_b32 s23, 0x20000
    s_cmp_ge_u32 s26, 4
    s_cbranch_scc1 {L('helper')}
""")
    KR, VR = 64, 128
    Q, M, AC, LS, PP, P, A, T, MR = 2, 6, 10, 14, 15, 16, 32, 40, 48
    e(f"""    ; ---------------- stream waves
    s_lshl_b32 s33, s27, 4
    s_add_u32 s33, s33, s28
    s_lshl_b32 s33, s33, 1
    s_add_u32 s33, s33, s29
    s_lshl_b32 s34, s33, 20
    s_mov_b32 s35, s34
    s_lshl_b32 s33, s26, 10
    v_lshl_add_u32 v1, v0, 4, s33
    s_waitcnt lgkmcnt(0)
    s_mov_b32 s20, s62
    s_mov_b32 s21, s63
    s_mov_b32 s4, s42
    s_mov_b32 s5, s43
    s_mov_b32 s6, 0x10000000
    s_mov_b32 s7, 0x20000
    s_mov_b32 s8, s44
    s_mov_b32 s9, s45
    s_mov_b32 s10, 0x10000000
    s_mov_b32 s11, 0x20000""")
    def issue(slot):
        slot %= 32
        if slot < 16:
            e(f"    buffer_load_dwordx4 v[{KR+4*slot}:{KR+4*slot+3}], v1, s[4:7], s34 offen nt\n    s_add_u32 s34, s34, 4096")
        else:
            s = slot - 16
            e(f"    buffer_load_dwordx4 v[{VR+4*s}:{VR+4*s+3}], v1, s[8:11], s35 offen nt\n    s_add_u32 s35, s35, 4096")
    for s in range(DF): issue(s)
    e("    s_barrier                      ; #0")
    e(f"""    v_and_b32 v{T}, 15, v0
    v_lshrrev_b32 v{T+1}, 4, v0
    v_lshrrev_b32 v{T+2}, 3, v{T}
    v_and_b32 v{T+1}, 1, v{T+1}
    v_and_b32 v{T+3}, 1, v0
    v_mov_b32 v{T+4}, 0xffff
    v_lshlrev_b32 v{T+3}, 4, v{T+3}
    v_lshlrev_b32 v{T+4}, v{T+3}, v{T+4}
    v_cmp_eq_u32 vcc, v{T+1}, v{T+2}
    v_bfe_u32 v{T+5}, v0, 1, 2
    s_nop 0
    v_cndmask_b32 v{T+4}, 0, v{T+4}, vcc""")
    for r in range(4):
        e(f"""    v_cmp_eq_u32 vcc, {r}, v{T+5}
    s_nop 1
    v_cndmask_b32 v{M+r}, 0, v{T+4}, vcc""")
    e(f"""    v_mov_b32 v{AC}, 0
    v_mov_b32 v{AC+1}, 0
    v_mov_b32 v{AC+2}, 0
    v_mov_b32 v{AC+3}, 0
    v_mov_b32 v{LS}, 0
    v_mov_b32 v{MR}, 0xff7fffff
    s_mov_b32 s36, 0xcccccccc
    s_mov_b32 s37, 0xcccccccc
    s_mov_b32 s38, 0xaaaaaaaa
    s_mov_b32 s39, 0xaaaaaaaa
    s_mov_b32 s64, {CEXP}
    v_and_b32 v{T}, 31, v0
    v_lshlrev_b32 v{T}, 5, v{T}""")
    for s in range(DF, 32):
        e(f"    s_waitcnt vmcnt({DF-1})")
        issue(s)
    e("    s_barrier")
    for w in range(4):
        e(f"    ds_read_b128 v[{192+8*w}:{195+8*w}], v{T} offset:{QP+1024*w}")
        e(f"    ds_read_b128 v[{196+8*w}:{199+8*w}], v{T} offset:{QP+1024*w+16}")
    e("    s_waitcnt lgkmcnt(0)")
    for k in range(8):
        e(f"    v_add_f32 v{192+k}, v{192+k}, v{200+k}\n    v_add_f32 v{208+k}, v{208+k}, v{216+k}")
    for k in range(8):
        e(f"    v_add_f32 v{192+k}, v{192+k}, v{208+k}")
    for k in range(4):
        e(f"    v_cvt_pk_bf16_f32 v{Q+k}, v{192+2*k}, v{193+2*k}")
    def tile(first, last):
        def pre(s):
            if first:
                if s + D >= 32:
                    e(f"    s_waitcnt vmcnt({D-1})"); issue(s + D)
                else:
                    e(f"    s_waitcnt vmcnt({31-s})")
            elif last and s + D >= 32:
                e(f"    s_waitcnt vmcnt({31-s})")
            else:
                e(f"    s_waitcnt vmcnt({D-1})"); issue(s + D)
        for i in range(16):
            pre(i)
            k = KR + 4*i
            e(f"    v_dot2_f32_bf16 v{P+i}, v{k}, v{Q}, 0")
            for c in range(1, 4):
                e(f"    v_dot2_f32_bf16 v{P+i}, v{k+c}, v{Q+c}, v{P+i}")
        for i in range(8): e(f"    v_add_f32_dpp v{P+i}, v{P+i}, v{P+i} row_ror:8 row_mask:0xf bank_mask:0x3")
        for i in range(8): e(f"    v_add_f32_dpp v{P+i}, v{P+i+8}, v{P+i+8} row_ror:8 row_mask:0xf bank_mask:0xc")
        for i in range(4): e(f"    v_add_f32_dpp v{P+i}, v{P+i}, v{P+i} row_half_mirror row_mask:0xf bank_mask:0x5")
        for i in range(4): e(f"    v_add_f32_dpp v{P+i}, v{P+i+4}, v{P+i+4} row_half_mirror row_mask:0xf bank_mask:0xa")
        for i in range(4): e(f"    v_add_f32_dpp v{P+4+i}, v{P+i}, v{P+i} quad_perm:[2,3,0,1] row_mask:0xf bank_mask:0xf")
        e(f"""    v_cndmask_b32 v{P}, v{P+4}, v{P+6}, s[36:37]
    v_cndmask_b32 v{P+1}, v{P+5}, v{P+7}, s[36:37]
    s_nop 0
    v_add_f32_dpp v{P+2}, v{P}, v{P} quad_perm:[1,0,3,2] row_mask:0xf bank_mask:0xf
    v_add_f32_dpp v{P+3}, v{P+1}, v{P+1} quad_perm:[1,0,3,2] row_mask:0xf bank_mask:0xf
    v_cndmask_b32 v{P}, v{P+2}, v{P+3}, s[38:39]
    v_cndmask_b32 v{P+1}, v{P+2}, v{P+3}, s[38:39]
    s_nop 1
    v_permlane16_swap_b32 v{P}, v{P+1}
    v_add_f32 v{P}, v{P}, v{P+1}
    v_cvt_pk_bf16_f32 v{P}, v{P}, v{P}
    v_and_b32 v{P}, 0xffff0000, v{P}
    v_max_f32 v{P+1}, v{P}, v{MR}
    s_nop 1
    v_max_f32_dpp v{P+1}, v{P+1}, v{P+1} quad_perm:[1,0,3,2] row_mask:0xf bank_mask:0xf
    s_nop 1
    v_max_f32_dpp v{P+1}, v{P+1}, v{P+1} quad_perm:[2,3,0,1] row_mask:0xf bank_mask:0xf
    s_nop 1
    v_max_f32_dpp v{P+1}, v{P+1}, v{P+1} row_half_mirror row_mask:0xf bank_mask:0xf
    s_nop 1
    v_max_f32_dpp v{P+1}, v{P+1}, v{P+1} row_ror:8 row_mask:0xf bank_mask:0xf
    v_mov_b32 v{P+2}, v{P+1}
    s_nop 1
    v_permlane32_swap_b32 v{P+1}, v{P+2}
    v_max_f32 v{P+1}, v{P+1}, v{P+2}
    v_sub_f32 v{P+2}, v{MR}, v{P+1}
    v_sub_f32 v{P+3}, v{P}, v{P+1}
    v_mul_f32 v{P+2}, s64, v{P+2}
    v_mul_f32 v{P+3}, s64, v{P+3}
    v_exp_f32 v{P+2}, v{P+2}
    v_exp_f32 v{P+3}, v{P+3}
    v_mov_b32 v{MR}, v{P+1}
    v_mul_f32 v{AC}, v{AC}, v{P+2}
    v_cvt_pk_bf16_f32 v{PP}, v{P+3}, v{P+3}
    v_mul_f32 v{AC+1}, v{AC+1}, v{P+2}
    v_mul_f32 v{AC+2}, v{AC+2}, v{P+2}
    v_mul_f32 v{AC+3}, v{AC+3}, v{P+2}
    v_fma_f32 v{LS}, v{LS}, v{P+2}, v{P+3}""")
        def abuild(i):
            a = A + 4*(i & 1)
            for r in range(4):
                e(f"    v_and_b32_dpp v{a+r}, v{PP}, v{M+r} row_newbcast:{i} row_mask:0xf bank_mask:0xf")
        abuild(0)
        for i in range(16):
            if i < 15: abuild(i+1)
            pre(16+i)
            if i == 15: e("    s_nop 0")
            a = A + 4*(i & 1)
            e(f"    v_mfma_f32_16x16x32_bf16 v[{AC}:{AC+3}], v[{a}:{a+3}], v[{VR+4*i}:{VR+4*i+3}], v[{AC}:{AC+3}]")
    tile(True, False)
    e("    s_mov_b32 s33, 14")
    e(f"{L('loop')}:")
    tile(False, False)
    e(f"    s_sub_u32 s33, s33, 1\n    s_cmp_lg_u32 s33, 0\n    s_cbranch_scc1 {L('loop')}")
    tile(False, True)
    stamp(4)
    e(f"""    v_add_f32_dpp v{LS}, v{LS}, v{LS} quad_perm:[1,0,3,2] row_mask:0xf bank_mask:0xf
    v_lshrrev_b32 v{T}, 5, v0
    v_and_b32 v{T+1}, 15, v0
    v_add_f32_dpp v{LS}, v{LS}, v{LS} quad_perm:[2,3,0,1] row_mask:0xf bank_mask:0xf
    v_lshl_add_u32 v{T}, v{T}, 4, v{T+1}
    v_and_b32 v{T+1}, 16, v0
    v_add_f32_dpp v{LS}, v{LS}, v{LS} row_half_mirror row_mask:0xf bank_mask:0xf
    v_lshl_add_u32 v{T}, v{T}, 5, v{T+1}
    s_lshl_b32 s33, s26, 10
    v_add_f32_dpp v{LS}, v{LS}, v{LS} row_ror:8 row_mask:0xf bank_mask:0xf
    v_add_u32 v{T}, s33, v{T}
    v_mov_b32 v{MR+1}, v{LS}
    s_lshl_b32 s33, s26, 3
    v_mov_b32 v{T+1}, s33
    v_permlane32_swap_b32 v{LS}, v{MR+1}
    ds_write_b128 v{T}, v[{AC}:{AC+3}] offset:{ACC}
    v_add_f32 v{MR+1}, v{LS}, v{MR+1}
    ds_write_b64 v{T+1}, v[{MR}:{MR+1}] offset:{ML}
    s_waitcnt lgkmcnt(0)
    s_barrier
""")
    def bfr(v): e(f"    v_cvt_pk_bf16_f32 v{v}, v{v}, v{v}\n    v_and_b32 v{v}, 0xffff0000, v{v}")
    e(f"""    s_cmp_lg_u32 s26, 0
    s_cbranch_scc1 {L('end')}
    v_mov_b32 v1, {TAGL}
    v_and_b32 v2, 7, v0
    v_lshlrev_b32 v3, 4, v2
    ds_read_b32 v1, v1
    ds_read_b128 v[4:7], v3 offset:{GX}
    v_lshlrev_b32 v2, 2, v2
    v_lshlrev_b32 v3, 4, v0
    s_lshl_b32 s33, s27, 5
    s_add_u32 s33, s33, s31
    s_lshl_b32 s33, s33, 12
    s_add_u32 s33, s33, {MA}
    s_mul_i32 s34, s27, 896
    s_mul_i32 s35, s31, 28
    s_add_u32 s34, s34, s35
    s_mov_b32 s12, s58
    s_mov_b32 s13, s59
    s_mov_b32 s14, 7168
    s_mov_b32 s15, 0x20000
    s_mov_b32 s35, {EPO}
    s_waitcnt lgkmcnt(0)
    v_readfirstlane_b32 s{TAG}, v1""")
    R = [16, 20, 24, 28]
    rest = gather(R, 3, 33, [0, 1024, 2048, 3072], [FULL]*4, SLP, first_issued=True)
    e("    s_barrier                      ; #3")
    rest()
    stamp(6)
    dpp = "row_mask:0xf bank_mask:0xf"
    for r in R: e(f"    v_max_f32_dpp v{r+1}, v{r}, v{r} row_ror:8 {dpp}")
    for r in R: e(f"    v_sub_f32 v{r+1}, v{r}, v{r+1}")
    for r in R: e(f"    v_mul_f32 v{r+1}, s64, v{r+1}")
    for r in R: e(f"    v_exp_f32 v{r+1}, v{r+1}")
    for r in R: e(f"    v_mul_f32 v{r+3}, v{r+2}, v{r+1}")
    for r in R: e(f"    v_add_f32_dpp v{r+3}, v{r+3}, v{r+3} row_ror:8 {dpp}")
    for r in R: e(f"    v_rcp_f32 v{r+3}, v{r+3}")
    for r in R: e(f"    v_mul_f32 v{r+1}, v{r+1}, v{r+3}")
    for r in R: e(f"    v_mov_b32_dpp v{r+3}, v{r+1} row_newbcast:7 row_mask:0xf bank_mask:0x3")
    for r in R: e(f"    v_mov_b32_dpp v{r+3}, v{r+1} row_newbcast:15 row_mask:0xf bank_mask:0xc")
    e(f"    v_mul_f32 v8, v{R[0]}, v{R[0]+3}\n    v_mul_f32 v9, v{R[0]+2}, v{R[0]+3}")
    for r in R[1:]: e(f"    v_fmac_f32 v8, v{r}, v{r+3}\n    v_fmac_f32 v9, v{r+2}, v{r+3}")
    def octsum(a, b, t0, t1):
        e(f"""    s_nop 0
    v_add_f32_dpp v{a}, v{a}, v{a} row_ror:8 {dpp}
    v_add_f32_dpp v{b}, v{b}, v{b} row_ror:8 {dpp}
    v_mov_b32 v{t0}, v{a}
    v_mov_b32 v{t1}, v{b}
    s_nop 0
    v_permlane16_swap_b32 v{a}, v{t0}
    v_permlane16_swap_b32 v{b}, v{t1}
    v_add_f32 v{a}, v{a}, v{t0}
    v_add_f32 v{b}, v{b}, v{t1}
    v_mov_b32 v{t0}, v{a}
    v_mov_b32 v{t1}, v{b}
    s_nop 0
    v_permlane32_swap_b32 v{a}, v{t0}
    v_permlane32_swap_b32 v{b}, v{t1}
    v_add_f32 v{a}, v{a}, v{t0}
    v_add_f32 v{b}, v{b}, v{t1}""")
    octsum(8, 9, 10, 11)
    e(f"""    v_cvt_pk_bf16_f32 v8, v8, v9
    v_and_b32 v9, 0xffff0000, v8
    v_lshlrev_b32 v8, 16, v8
    v_mul_f32 v8, v8, v4
    v_mul_f32 v9, v9, v5
    v_cvt_pk_bf16_f32 v8, v8, v9
    v_and_b32 v9, 0xffff0000, v8
    v_lshlrev_b32 v8, 16, v8
    v_add_f32 v8, v8, v6
    v_add_f32 v9, v9, v7
    v_cvt_pk_bf16_f32 v8, v8, v9
    s_mov_b64 exec, 0x7f
    buffer_store_dword v8, v2, s[12:15], s34 offen
    s_cmp_lg_u32 s2, 0
    s_cbranch_scc1 {L('fin')}
    s_mov_b64 exec, 1
    buffer_store_dword v1, off, s[20:23], s35 sc1
    s_branch {L('fin')}
""")
    B0 = 32
    HM, HA, HD, X0, X1, TM, AD, H = 2, 6, 14, 18, 19, 20, 1, 21
    RHO, OC, CO, TA, XA, PO = H, H+1, H+2, H+3, H+4, H+5
    U = H+6
    def srd(d, lo, hi, size):
        e(f"    s_mov_b32 s{d}, s{lo}\n    s_mov_b32 s{d+1}, s{hi}\n    s_mov_b32 s{d+2}, {size}\n    s_mov_b32 s{d+3}, 0x20000")
    def dreg(s): return HD if s == 0 else B0 + 4*(s-1)
    def proj(groups, nseg, waits):
        n = len(groups)*nseg
        def ab(gi):
            mr, G = groups[gi]; a = HA + 4*(gi & 1)
            e(f"    v_mov_b32_dpp v{TM}, v{mr} row_newbcast:{G} row_mask:0xf bank_mask:0x3")
            e(f"    v_mov_b32_dpp v{TM}, v{mr} row_newbcast:{8+G} row_mask:0xf bank_mask:0xc")
            for r in range(4): e(f"    v_and_b32 v{a+r}, v{TM}, v{HM+r}")
        ab(0)
        for gi in range(len(groups)):
            if gi + 1 < len(groups): ab(gi+1)
            else: e("    s_nop 1")
            a = HA + 4*(gi & 1)
            if waits is not None: e(f"    s_waitcnt vmcnt({min(63, n - (gi+1)*nseg + waits)})")
            for s in range(nseg):
                b = B0 + 4*(gi*nseg + s); d = dreg(s)
                c = "0" if gi == 0 else f"v[{d}:{d+3}]"
                e(f"    v_mfma_f32_16x16x32_bf16 v[{d}:{d+3}], v[{a}:{a+3}], v[{b}:{b+3}], {c}")
        e("    s_nop 7")
        for s in range(0, nseg, 2):
            d0 = dreg(s); d1 = dreg(s+1) if s+1 < nseg else dreg(nseg)
            for r in range(4): e(f"    v_permlane32_swap_b32 v{d0+r}, v{d1+r}")
        e("    s_nop 0")
        for s in range(0, nseg, 2):
            d0 = dreg(s); d1 = dreg(s+1) if s+1 < nseg else dreg(nseg)
            for r in range(4): e(f"    v_add_f32_dpp v{d0+r}, v{d1+r}, v{d0+r} row_ror:8 row_mask:0xf bank_mask:0xf")
    def hsum(v, t):
        for m in ("quad_perm:[1,0,3,2]", "quad_perm:[2,3,0,1]", "row_half_mirror", "row_ror:8"):
            e(f"    s_nop 1\n    v_add_f32_dpp v{v}, v{v}, v{v} {m} {dpp}")
        e(f"    v_mov_b32 v{t}, v{v}\n    s_nop 1\n    v_permlane16_swap_b32 v{v}, v{t}\n    v_add_f32 v{v}, v{v}, v{t}")
    def tile_dma(srdreg, va, sbase, stride, ldsbase, n):
        e(f"""    s_mul_i32 s34, s26, {8*stride}
    s_add_u32 s{sbase}, s{sbase}, s34
    s_lshl_b32 s34, s26, 10
    s_add_u32 m0, s34, {ldsbase}""")
        uid[0] += 1; lab = L(f"t{uid[0]}")
        for i in range(0, n, 4):
            if n - i < 4: e(f"    s_cmp_ge_u32 s26, {n-i}\n    s_cbranch_scc1 {lab}")
            e(f"    s_nop 0\n    buffer_load_dwordx4 v{va}, s[{srdreg}:{srdreg+3}], s{sbase} offen nt lds")
            if i + 4 < n: e(f"    s_add_u32 s{sbase}, s{sbase}, {32*stride}\n    s_add_u32 m0, m0, 4096")
        e(f"{lab}:")
    def hsync(target):
        uid[0] += 1; lab = L(f"s{uid[0]}")
        e(f"""    s_waitcnt vmcnt(0) lgkmcnt(0)
    s_mov_b64 exec, 1
    v_mov_b32 v{U}, {CNT}
    v_mov_b32 v{U+1}, 1
    ds_add_u32 v{U}, v{U+1}
    s_mov_b32 s{TO}, 0x100000
{lab}:
    ds_read_b32 v{U+1}, v{U}
    s_sub_u32 s{TO}, s{TO}, 1
    s_cbranch_scc1 {lab}d
    s_waitcnt lgkmcnt(0)
    v_readfirstlane_b32 s34, v{U+1}
    s_cmp_lt_u32 s34, {target}
    s_cbranch_scc1 {lab}
{lab}d:
    s_mov_b64 exec, -1""")
    def tile_mm(rowsg):
        e(f"""    s_mul_i32 s34, s{rowsg}, 224
    v_add_u32 v{U}, s34, v{XA}""")
        for k in range(7):
            e(f"    ds_read_b64_tr_b16 v[{B0+8+4*k}:{B0+9+4*k}], v{TA} offset:{WT+2048*k}")
            e(f"    ds_read_b64 v[{B0+10+4*k}:{B0+11+4*k}], v{U} offset:{XN+32*k}")
        for k in range(7):
            e(f"    s_waitcnt lgkmcnt({12-2*k})")
            e(f"    v_mfma_f32_16x16x16_bf16 v[{B0+4}:{B0+7}], v[{B0+8+4*k}:{B0+9+4*k}], v[{B0+10+4*k}:{B0+11+4*k}], {'0' if k == 0 else f'v[{B0+4}:{B0+7}]'}")
        e(f"""    v_mov_b32 v{B0+1}, s{TAG}
    v_mov_b32 v{B0+3}, s{TAG}
    s_nop 5
    v_cndmask_b32 v{B0}, v{B0+6}, v{B0+4}, s[36:37]
    v_cndmask_b32 v{B0+2}, v{B0+7}, v{B0+5}, s[36:37]""")
    e(f"""{L('helper')}:
    s_setprio 2
    s_sub_u32 s26, s26, 4
    v_lshrrev_b32 v{U}, 5, v0
    v_and_b32 v{U+1}, 31, v0
    v_mul_u32_u24 v{U+2}, 896, v{U}
    v_lshl_add_u32 v{U+2}, v{U+1}, 5, v{U+2}
    v_cmp_gt_u32 s[38:39], 28, v{U+1}
    v_lshrrev_b32 v{RHO}, 3, v0
    v_and_b32 v{OC}, 7, v0
    v_mov_b32 v{U+3}, 0x8000
    v_lshlrev_b32 v{OC}, 4, v{OC}
    v_cndmask_b32 v{U+2}, v{U+3}, v{U+2}, s[38:39]
    v_lshl_add_u32 v{AD}, v{RHO}, 13, v{OC}
    s_mul_i32 s33, s26, 1792
    s_mov_b32 s35, {EPO}
    s_lshr_b32 s24, s32, 3
    s_bfe_u32 s25, s32, 0x20001
    s_waitcnt lgkmcnt(0)
    s_mov_b32 s20, s62
    s_mov_b32 s21, s63""")
    srd(16, 40, 41, 7168)
    e(f"""    buffer_load_dwordx4 v[{B0}:{B0+3}], v{U+2}, s[16:19], s33 offen nt
    buffer_load_dwordx4 v[{B0+4}:{B0+7}], v{U+2}, s[16:19], s33 offen offset:16 nt
    buffer_load_dword v{X0}, off, s[20:23], s35 sc1 nt""")
    srd(12, 46, 47, 448*8192)
    e(f"""    s_mul_i32 s33, s24, {112*8192}
    s_lshl_b32 s34, s28, 9
    s_add_u32 s33, s33, s34
    s_lshl_b32 s34, s25, 7
    s_add_u32 s33, s33, s34""")
    tile_dma(12, AD, 33, 8192, WT, 14)
    e(f"""    v_mov_b32 v{U+3}, 0
    v_mov_b32 v{U+4}, {CNT}
    ds_write_b32 v{U+4}, v{U+3}
    s_mul_i32 s34, s26, {2*XP}
    v_mul_u32_u24 v{U}, {XP}, v{U}
    v_lshl_add_u32 v{U}, v{U+1}, 5, v{U}
    v_add_u32 v{U}, s34, v{U}
    s_waitcnt lgkmcnt(0)
    s_barrier
    v_and_b32 v{U+1}, 1, v0
    v_mov_b32 v{U+2}, 0xffff
    v_lshlrev_b32 v{U+1}, 4, v{U+1}
    v_lshlrev_b32 v{U+2}, v{U+1}, v{U+2}
    v_bfe_u32 v{U+1}, v0, 1, 2""")
    for r in range(4):
        e(f"""    v_cmp_eq_u32 vcc, {r}, v{U+1}
    s_nop 1
    v_cndmask_b32 v{HM+r}, 0, v{U+2}, vcc""")
    e(f"""    ; result column byte offset of the 8-row layout: (l>>5)*256 + (l&7)*32 + (l&16)
    v_lshrrev_b32 v{CO}, 5, v0
    v_lshlrev_b32 v{CO}, 8, v{CO}
    v_lshl_add_u32 v{CO}, v{OC}, 1, v{CO}
    v_and_b32 v{U+1}, 16, v0
    v_add_u32 v{CO}, v{CO}, v{U+1}
    v_lshrrev_b32 v{TA}, 2, v0
    v_and_b32 v{U+1}, 3, v0
    v_lshlrev_b32 v{U+1}, 3, v{U+1}
    v_lshl_add_u32 v{TA}, v{TA}, 7, v{U+1}
    s_lshl_b32 s34, s26, 5
    v_add_u32 v{TA}, s34, v{TA}
    v_and_b32 v{U+1}, 7, v0
    v_lshrrev_b32 v{U+2}, 4, v0
    v_mul_u32_u24 v{XA}, {XP}, v{U+1}
    v_lshl_add_u32 v{XA}, v{U+2}, 3, v{XA}
    v_lshlrev_b32 v{PO}, 4, v{RHO}                 ; (4g + 2*(n>>3)) * 8
    s_mov_b32 s36, 0x00ff00ff
    s_mov_b32 s37, 0x00ff00ff
    s_waitcnt vmcnt(4)""")
    X = B0 + 8
    for k in range(8):
        e(f"    v_lshlrev_b32 v{X+2*k}, 16, v{B0+k}\n    v_and_b32 v{X+2*k+1}, 0xffff0000, v{B0+k}")
    for k in range(8): e(f"    v_add_f32 v{B0+k}, v{X+2*k}, v{X+2*k+1}")
    for st in (4, 2, 1):
        for k in range(st): e(f"    v_add_f32 v{B0+k}, v{B0+k}, v{B0+st+k}")
    hsum(B0, U+1)
    e(f"    v_mul_f32 v{B0}, 0x3b124925, v{B0}     ; mean (1/448)")
    Y = X + 16
    for k in range(16): e(f"    v_sub_f32 v{Y+k}, v{X+k}, v{B0}")
    for k in range(4): e(f"    v_mul_f32 v{B0+1+k}, v{Y+k}, v{Y+k}")
    for k in range(4, 16): e(f"    v_fmac_f32 v{B0+1+(k&3)}, v{Y+k}, v{Y+k}")
    e(f"""    v_add_f32 v{B0+1}, v{B0+1}, v{B0+2}
    v_add_f32 v{B0+3}, v{B0+3}, v{B0+4}
    v_add_f32 v{B0+1}, v{B0+1}, v{B0+3}
    v_cndmask_b32 v{B0+1}, 0, v{B0+1}, s[38:39]""")
    hsum(B0+1, U+1)
    e(f"    v_mul_f32 v{B0+1}, 0x3b124925, v{B0+1}     ; variance")
    bfr(B0); bfr(B0+1)
    e(f"    v_add_f32 v{B0+1}, 0x3727c5ac, v{B0+1}     ; + 1e-5")
    bfr(B0+1)
    e(f"    v_sqrt_f32 v{B0+1}, v{B0+1}")
    for k in range(16): e(f"    v_sub_f32 v{X+k}, v{X+k}, v{B0}")
    bfr(B0+1)
    e(f"    v_rcp_f32 v{B0+1}, v{B0+1}")
    for k in range(8): e(f"    v_cvt_pk_bf16_f32 v{Y+k}, v{X+2*k}, v{X+2*k+1}")
    for k in range(8):
        e(f"    v_lshlrev_b32 v{X+2*k}, 16, v{Y+k}\n    v_and_b32 v{X+2*k+1}, 0xffff0000, v{Y+k}")
    for k in range(16): e(f"    v_mul_f32 v{X+k}, v{X+k}, v{B0+1}")
    for k in range(8): e(f"    v_cvt_pk_bf16_f32 v{Y+k}, v{X+2*k}, v{X+2*k+1}")
    e(f"""    s_mov_b64 exec, s[38:39]
    ds_write_b128 v{U}, v[{Y}:{Y+3}] offset:{XN}
    ds_write_b128 v{U}, v[{Y+4}:{Y+7}] offset:{XN+16}""")
    hsync(4)
    e(f"""    v_readfirstlane_b32 s{TAG}, v{X0}
    s_mul_i32 s{TAG}, s{TAG}, 0x9e3779b1
    s_add_u32 s{TAG}, s{TAG}, 0x7f4a7c15""")
    tile_mm(24)
    e(f"""    v_lshl_add_u32 v{U}, v{OC}, 9, v{PO}
    s_lshl_b32 s33, s28, 16
    s_lshl_b32 s34, s24, 11
    s_add_u32 s33, s33, s34
    s_lshl_b32 s34, s25, 9
    s_add_u32 s33, s33, s34
    s_lshl_b32 s34, s26, 7
    s_add_u32 s33, s33, s34
    s_add_u32 s33, s33, {QA}
    buffer_store_dwordx4 v[{B0}:{B0+3}], v{U}, s[20:23], s33 offen sc1
    s_lshl_b32 s33, s28, 3
    s_add_u32 s33, s33, s27
    s_lshl_b32 s33, s33, 2
    s_add_u32 s33, s33, s26
    s_lshl_b32 s33, s33, 11
    s_add_u32 s33, s33, {QA}
    v_lshlrev_b32 v{U+1}, 4, v0
    v_mov_b32 v{U+2}, {TAGL}
    ds_write_b32 v{U+2}, v{B0+1}""")
    stamp(5)
    if 'w' in skip: e("    s_waitcnt vmcnt(0)")
    gather([B0+8, B0+12], U+1, 33, [0, 1024], [FULL]*2, SLQ)
    e(f"""    s_lshl_b32 s33, s26, 10
    v_lshl_add_u32 v{U}, v0, 3, s33
    ds_write2_b32 v{U}, v{B0+8}, v{B0+10} offset0:{QP//4} offset1:{QP//4+1}
    ds_write2_b32 v{U}, v{B0+12}, v{B0+14} offset0:{QP//4+128} offset1:{QP//4+129}
    s_waitcnt lgkmcnt(0)""")
    stamp(3)
    e(f"""    s_barrier                      ; #1
    s_setprio 0""")
    e(f"""    s_cmp_ge_u32 s30, {0 if 'f' in skip else 28}
    s_cbranch_scc1 {L('wo')}
    s_bitcmp1_b32 s27, 0
    s_cselect_b32 s12, s54, s52
    s_cselect_b32 s13, s55, s53
    s_mov_b32 s14, {448*3584}
    s_lshr_b32 s24, s27, 1
    v_mul_u32_u24 v{AD}, 3584, v{RHO}
    v_add_u32 v{AD}, v{AD}, v{OC}
    s_mul_i32 s33, s24, {112*3584}
    s_lshl_b32 s34, s30, 7
    s_add_u32 s33, s33, s34""")
    tile_dma(12, AD, 33, 3584, WT, 14)
    srd(4, 56, 57, 1792*896)
    e(f"""    v_mul_u32_u24 v{U+2}, 896, v{RHO}
    v_add_u32 v{U+2}, v{U+2}, v{OC}
    s_mul_i32 s33, s30, {64*896}
    s_lshl_b32 s34, s27, 7
    s_add_u32 s33, s33, s34
    s_cmp_eq_u32 s27, 7
    s_cbranch_scc1 {L('nowd')}""")
    tile_dma(4, U+2, 33, 896, WD, 8)
    e(f"{L('nowd')}:")
    hsync(8)
    tile_mm(24)
    e(f"""    v_lshl_add_u32 v{U}, v{OC}, 8, v{PO}
    s_lshl_b32 s33, s30, 15
    s_lshl_b32 s34, s27, 9
    s_add_u32 s33, s33, s34
    s_lshl_b32 s34, s26, 7
    s_add_u32 s33, s33, s34
    s_add_u32 s33, s33, {F1A}
    buffer_store_dwordx4 v[{B0}:{B0+3}], v{U}, s[20:23], s33 offen sc1
    s_cmp_lg_u32 s26, 0
    s_cbranch_scc1 {L('wo')}
    s_lshl_b32 s33, s30, 3
    s_add_u32 s33, s33, s27
    s_lshl_b32 s35, s33, 8
    s_add_u32 s35, s35, {HA_}
    s_lshl_b32 s33, s33, 12
    s_add_u32 s33, s33, {F1A}
    v_lshlrev_b32 v{U+1}, 4, v0
    s_waitcnt vmcnt(0)""")
    G = [B0+8, B0+12, B0+16, B0+20]
    gather(G, U+1, 33, [0, 1024, 2048, 3072], [FULL]*4, 16)
    g0, g1, u0, u1 = G[0], G[0]+2, G[1], G[1]+2
    e(f"""    v_add_f32 v{G[0]}, v{G[0]}, v{G[1]}
    v_add_f32 v{G[0]+2}, v{G[0]+2}, v{G[1]+2}
    v_add_f32 v{G[2]}, v{G[2]}, v{G[3]}
    v_add_f32 v{G[2]+2}, v{G[2]+2}, v{G[3]+2}
    v_add_f32 v{g0}, v{G[0]}, v{G[2]}
    v_add_f32 v{g1}, v{G[0]+2}, v{G[2]+2}""")
    bfr(g0); bfr(g1)
    e(f"""    v_mov_b32 v{u0}, v{g0}
    v_mov_b32 v{u1}, v{g1}
    s_nop 1
    v_permlane32_swap_b32 v{g0}, v{u0}
    v_permlane32_swap_b32 v{g1}, v{u1}""")
    for g in (g0, g1):
        e(f"""    v_mul_f32 v{g+1}, v{g}, v{g}
    v_mul_f32 v{g+1}, 0x3d372713, v{g+1}
    v_fma_f32 v{g+1}, v{g+1}, v{g}, v{g}
    v_mul_f32 v{g+1}, 0xc0135761, v{g+1}
    v_exp_f32 v{g+1}, v{g+1}
    s_nop 0
    v_add_f32 v{g+1}, 1.0, v{g+1}
    v_rcp_f32 v{g+1}, v{g+1}
    s_nop 0
    v_mul_f32 v{g}, v{g}, v{g+1}""")
        bfr(g)
    e(f"""    v_mul_f32 v{g0}, v{g0}, v{u0}
    v_mul_f32 v{g1}, v{g1}, v{u1}
    v_cvt_pk_bf16_f32 v{B0}, v{g0}, v{g1}
    v_lshlrev_b32 v{U}, 3, v0
    s_mov_b32 exec_hi, 0
    buffer_store_dwordx2 v[{B0}:{B0+1}], v{U}, s[20:23], s35 offen sc1
    s_mov_b32 exec_hi, -1
    s_cmp_eq_u32 s27, 7
    s_cbranch_scc1 {L('wo')}
    v_and_b32 v{U+1}, 48, v0
    v_lshl_add_u32 v{U+1}, v{OC}, 4, v{U+1}          ; batch*256 + g*16
    s_lshl_b32 s33, s30, 11
    s_add_u32 s33, s33, {HA_}
    s_waitcnt vmcnt(0)""")
    gather(G, U+1, 33, [0, 64, 128, 192], [FULL]*4, 16)
    W = B0 + 24
    for ct in range(4):
        for k in range(4): e(f"    ds_read_b64_tr_b16 v[{W+8*ct+2*k}:{W+8*ct+2*k+1}], v{TA} offset:{WD+2048*k+32*ct}")
    for k in range(4): e(f"    v_mov_b32 v{G[k]+1}, v{G[k]+2}")
    DD = W + 32
    e(f"""    v_lshl_add_u32 v{U}, v{OC}, 13, v{PO}
    s_mul_i32 s33, s30, 3584
    s_lshl_b32 s34, s27, 9
    s_add_u32 s33, s33, s34
    s_add_u32 s33, s33, {DA}
    s_waitcnt lgkmcnt(0)""")
    for k in range(4):
        for ct in range(4):
            e(f"    v_mfma_f32_16x16x16_bf16 v[{DD+4*ct}:{DD+4*ct+3}], v[{W+8*ct+2*k}:{W+8*ct+2*k+1}], v[{G[k]}:{G[k]+1}], {'0' if k == 0 else f'v[{DD+4*ct}:{DD+4*ct+3}]'}")
    e("    s_nop 7")
    for ct in range(4):
        d = DD + 4*ct
        e(f"""    v_cndmask_b32 v{d}, v{d+2}, v{d}, s[36:37]
    v_cndmask_b32 v{d+2}, v{d+3}, v{d+1}, s[36:37]
    v_mov_b32 v{d+1}, s{TAG}
    v_mov_b32 v{d+3}, s{TAG}
    buffer_store_dwordx4 v[{d}:{d+3}], v{U}, s[20:23], s33 offen offset:{128*ct} sc1""")
    e("    s_waitcnt vmcnt(0)")
    e(f"{L('wo')}:")
    srd(12, 48, 49, 4096*896)
    e(f"""    s_lshl_b32 s33, s28, 2
    s_add_u32 s33, s33, s26
    s_mul_i32 s33, s33, {64*896}
    v_mul_u32_u24 v{AD}, {8*896}, v{RHO}
    v_add_u32 v{AD}, v{AD}, v{OC}""")
    def wol(G0, G1):
        for Gi in range(G0, G1):
            for s in range(7):
                b = B0 + 4*(Gi*7+s)
                if 'o' in skip: continue
                e(f"    buffer_load_dwordx4 v[{b}:{b+3}], v{AD}, s[12:15], s33 offen offset:{128*s} nt")
                if TH: e(f"    s_waitcnt vmcnt({TH-1})")
            e(f"    s_add_u32 s33, s33, 896")
    wol(0, 7)
    G = [B0+196, B0+200, B0+204, B0+208]
    e(f"""    s_cmp_lg_u32 s26, 1
    s_cbranch_scc1 {L('wo2')}
    v_mul_u32_u24 v{U}, 3584, v{RHO}
    v_add_u32 v{U}, v{U}, v{OC}
    v_lshrrev_b32 v{U+1}, 2, v{OC}
    s_mul_i32 s34, s27, 896
    s_mul_i32 s35, s31, 28
    s_add_u32 s34, s34, s35
    buffer_load_dword v{U+2}, v{U+1}, s[16:19], s34 offen nt
    s_lshl_b32 s34, s27, 17
    s_mul_i32 s35, s31, 112
    s_add_u32 s34, s34, s35
    s_add_u32 s34, s34, {DA}
    s_add_u32 s35, s34, {8*3584}
    s_add_u32 s24, s34, {16*3584}
    s_add_u32 s25, s34, {24*3584}
    v_mov_b32 v{G[3]}, 0
    v_mov_b32 v{G[3]+2}, 0""")
    M7 = 0x7f7f7f7f7f7f7f7f
    if 'f' not in skip: gather(G, U, [34, 35, 24, 25], [0]*4, [M7, M7, M7, 0x7f7f7f7f], 32)
    else: e("    s_waitcnt vmcnt(0)")
    a, b_ = G[0], G[0]+1
    e(f"""    v_add_f32 v{G[0]}, v{G[0]}, v{G[1]}
    v_add_f32 v{G[0]+2}, v{G[0]+2}, v{G[1]+2}
    v_add_f32 v{G[2]}, v{G[2]}, v{G[3]}
    v_add_f32 v{G[2]+2}, v{G[2]+2}, v{G[3]+2}
    v_add_f32 v{a}, v{G[0]}, v{G[2]}
    v_add_f32 v{b_}, v{G[0]+2}, v{G[2]+2}""")
    octsum(a, b_, G[1], G[1]+1)
    for v in (a, b_):
        bfr(v)
        e(f"""    v_mul_f32 v{G[1]}, 0xbfb8aa3b, v{v}
    v_exp_f32 v{G[1]}, v{G[1]}
    s_nop 0
    v_add_f32 v{G[1]}, 1.0, v{G[1]}
    v_rcp_f32 v{G[1]}, v{G[1]}
    s_nop 0
    v_mul_f32 v{v}, v{v}, v{G[1]}""")
        bfr(v)
    e(f"""    v_lshlrev_b32 v{G[0]+2}, 16, v{U+2}
    v_and_b32 v{G[0]+3}, 0xffff0000, v{U+2}
    s_mov_b64 exec, 0xff
    ds_write_b128 v{OC}, v[{G[0]}:{G[0]+3}] offset:{GX}
    s_mov_b64 exec, -1
    s_waitcnt lgkmcnt(0)
{L('wo2')}:""")
    wol(7, 8)
    MM, LL = TA, XA
    e(f"""    s_lshl_b32 s33, s26, 8
    v_lshl_add_u32 v{U}, v0, 2, s33
    v_mov_b32 v{U+1}, 0
    s_mov_b32 s64, {CEXP}
    s_lshl_b32 s33, s26, 11
    v_add_u32 v{CO}, s33, v{CO}
    s_mul_i32 s33, s26, 448
    v_mul_u32_u24 v{U+2}, 56, v{RHO}
    v_lshrrev_b32 v{U+3}, 1, v{OC}
    v_add3_u32 v{U+2}, v{U+2}, v{U+3}, s33
    v_lshl_add_u32 v{U+3}, v{RHO}, 12, v{OC}
    s_lshl_b32 s33, s27, 2
    s_add_u32 s33, s33, s26
    s_lshl_b32 s33, s33, 15
    s_lshl_b32 s34, s31, 7
    s_add_u32 s33, s33, s34
    s_add_u32 s33, s33, {MA}
    s_mov_b32 s38, 0x80808080
    s_mov_b32 s39, 0x80808080
    s_waitcnt vmcnt(0)""")
    stamp(7)
    e(f"""    s_barrier                      ; #2
    ds_read_b128 v[{HA}:{HA+3}], v{U+1} offset:{ML}
    ds_read_b128 v[{HA+4}:{HA+7}], v{U+1} offset:{ML+16}""")
    for w in range(4): e(f"    ds_read_b32 v{HD+w}, v{U} offset:{ACC+1024*w}")
    e(f"""    s_waitcnt lgkmcnt(4)
    v_max_f32 v{MM}, v{HA}, v{HA+2}
    v_max3_f32 v{MM}, v{MM}, v{HA+4}, v{HA+6}      ; M""")
    for w in range(4): e(f"    v_sub_f32 v{HA+2*w}, v{HA+2*w}, v{MM}")
    for w in range(4): e(f"    v_mul_f32 v{HA+2*w}, s64, v{HA+2*w}")
    for w in range(4): e(f"    v_exp_f32 v{HA+2*w}, v{HA+2*w}")
    e(f"""    s_waitcnt lgkmcnt(0)
    v_mul_f32 v{X0}, v{HA}, v{HD}
    v_mul_f32 v{LL}, v{HA}, v{HA+1}""")
    for w in range(1, 4): e(f"    v_fmac_f32 v{X0}, v{HA+2*w}, v{HD+w}\n    v_fmac_f32 v{LL}, v{HA+2*w}, v{HA+2*w+1}")
    e(f"""    v_cvt_pk_bf16_f32 v{X0}, v{X0}, v{X0}
    s_nop 1""")
    proj([(X0, Gi) for Gi in range(8)], 7, None)
    e(f"    s_mov_b64 exec, s[36:37]")
    for s in (0, 2, 4, 6): e(f"    ds_write_b128 v{CO}, v[{dreg(s)}:{dreg(s)+3}] offset:{SP+256*s}")
    e(f"""    s_mov_b64 exec, -1
    v_mov_b32 v{HA+1}, s{TAG}
    v_mov_b32 v{HA+3}, s{TAG}
    s_waitcnt lgkmcnt(0)
    s_barrier                      ; #3""")
    Z = B0 + 64
    for w in range(4): e(f"    ds_read_b64 v[{Z+2*w}:{Z+2*w+1}], v{U+2} offset:{SP+2048*w}")
    e(f"""    s_waitcnt lgkmcnt(2)
    v_pk_add_f32 v[{Z}:{Z+1}], v[{Z}:{Z+1}], v[{Z+2}:{Z+3}]
    s_waitcnt lgkmcnt(0)
    v_pk_add_f32 v[{Z+4}:{Z+5}], v[{Z+4}:{Z+5}], v[{Z+6}:{Z+7}]
    v_pk_add_f32 v[{Z}:{Z+1}], v[{Z}:{Z+1}], v[{Z+4}:{Z+5}]
    v_cndmask_b32 v{HA}, v{Z}, v{MM}, s[38:39]
    v_cndmask_b32 v{HA+2}, v{Z+1}, v{LL}, s[38:39]
    buffer_store_dwordx4 v[{HA}:{HA+3}], v{U+3}, s[20:23], s33 offen sc1""")
    if stamps:
        e(f"    s_add_u32 s26, s26, 4")
    e(f"{L('fin')}:")
    if stamps:
        e(f"""    s_waitcnt vmcnt(0)
    s_memrealtime s[82:83]
    s_getreg_b32 s84, hwreg(HW_REG_XCC_ID)
    s_mov_b32 s85, 0
    s_waitcnt lgkmcnt(0)
    s_mov_b64 exec, 1
    s_lshl_b32 s33, s2, 6
    v_mov_b32 v1, s33
    s_cmp_eq_u32 s26, 0
    s_cbranch_scc0 {L('st4')}""")
        for k in (0, 1, 2, 4, 6):
            e(f"    v_mov_b32 v2, s{80+2*k}\n    v_mov_b32 v3, s{81+2*k}\n    buffer_store_dwordx2 v[2:3], v1, s[20:23], 0 offen offset:{8*k}")
        e(f"""{L('st4')}:
    s_cmp_eq_u32 s26, 4
    s_cbranch_scc0 {L('end')}""")
        for k in (3, 5, 7):
            e(f"    v_mov_b32 v2, s{80+2*k}\n    v_mov_b32 v3, s{81+2*k}\n    buffer_store_dwordx2 v[2:3], v1, s[20:23], 0 offen offset:{8*k}")
    e(f"{L('end')}:\n    s_endpgm")
    desc = f""".p2align 6
.amdhsa_kernel {name}
  .amdhsa_next_free_vgpr 256
  .amdhsa_next_free_sgpr 96
  .amdhsa_accum_offset 256
  .amdhsa_group_segment_fixed_size 0
  .amdhsa_kernarg_size 96
  .amdhsa_user_sgpr_count 2
  .amdhsa_user_sgpr_kernarg_segment_ptr 1
  .amdhsa_system_sgpr_workgroup_id_x 1
.end_amdhsa_kernel
"""
    return "\n".join(o) + "\n", desc, LDS

def final(path, **kw):
    body, desc, lds = gen(**kw)
    ref = open("cdna_kernels/" + NAME + ".s.ref").read().split("\n")
    head = [l for l in ref if l.startswith(";") and "@launch" not in l]
    s = "\n".join(head) + f"\n; @launch grid=(256,1,1) block=(512,1,1) lds={lds}\n" + '.amdgcn_target "amdgcn-amd-amdhsa--gfx950"\n.text\n' + body + '.section .rodata,"a"\n' + desc
    open(path, "w").write(s)
if __name__ == "__main__":
    final("cdna_kernels/" + NAME + ".s")
```
